```python
import torch

def _softmax(x, axis=-1):
    return torch.softmax(x, dim=axis)
def _gelu(x):
    return torch.nn.functional.gelu(x, approximate="tanh")
def _silu(x):
    return torch.nn.functional.silu(x)
def _sigmoid(x):
    return torch.sigmoid(x)
def _layernorm(x, axis=-1, eps=1e-5):
    m = x.mean(dim=axis, keepdim=True)
    v = x.var(dim=axis, keepdim=True, unbiased=False)
    return (x - m) / torch.sqrt(v + eps)
def _scatter_add(tgt, idx, src, axis=0):
    return tgt.clone().index_add_(axis, idx, src)
def _segment_sum(src, seg, n):
    out = torch.zeros((n,) + src.shape[1:], dtype=src.dtype)
    return out.index_add_(0, seg, src)
def _pad(x, pw):
    flat = tuple(v for pair in reversed(pw) for v in pair)
    return torch.nn.functional.pad(x, flat)

kernel_name = 'standalone__structured_sparse_n_m__ragged'

def setup_inputs():

    _w = (lambda a: (lambda t: t.to(torch.bfloat16) if t.is_floating_point() else t)(torch.as_tensor(a)))
    B, S, D = 4, 2048, 576
    assert D % 4 == 0, "d_model must be divisible by M=4 for 2:4 sparsity"
    return {
        "x": _w((lambda *s: torch.randn(*s, dtype=torch.bfloat16) * 0.05)(B, S, D)),
        "w": _w((lambda *s: torch.randn(*s, dtype=torch.bfloat16) * 0.05)(D, D)),
        "b": _w((lambda *s: torch.randn(*s, dtype=torch.bfloat16) * 0.05)(D)),
    }

def reference(x, w, b):
    B, S, D = x.shape
    N, M = 2, 4
    G = D // M
    wg = w.reshape(G, M, D)
    mag = torch.abs(wg)
    order = torch.argsort(mag, 1)
    thr = (lambda x, i, axis: torch.take_along_dim(x, i, dim=axis))(mag, order[:, M - N:M - N + 1, :], 1)
    mask = (lambda x, dt: x.to(dt))(mag >= thr, w.dtype)
    wp = (wg * mask).reshape(D, D)
    return torch.einsum("bsd,df->bsf", x, wp) + b
```

```python
import sys, argparse

NAME = "standalone__structured_sparse_n_m__ragged_kernel"

def gen(xmod="", wmod="", omod="", rot=2, XR=3, WR=3, XD=2, WD=2, name=NAME, stamps=False):
    L = []
    A = L.append
    XSLOT = 4096
    XB = lambda w: w * XR * XSLOT
    WBASE = 4 * XR * XSLOT
    WP = 320
    WSLOT = 64 * WP
    LDS_TOTAL = WBASE + WR * WSLOT
    EP = 304
    assert XR * XSLOT >= 32 * EP
    if stamps: A("s_memtime s[60:61]")
    A("s_cmp_ge_u32 s2, 256")
    A("s_cbranch_scc1 L_exit")
    A("s_load_dwordx4 s[4:7], s[0:1], 0")
    A("s_load_dwordx4 s[8:11], s[0:1], 16")
    if stamps: A("s_load_dwordx2 s[70:71], s[0:1], 40")
    A("v_lshrrev_b32 v1, 6, v0")
    A("v_and_b32 v2, 63, v0")
    A("v_readfirstlane_b32 s3, v1")
    A("s_and_b32 s30, s2, 7")
    A("s_lshr_b32 s31, s2, 3")
    A("s_and_b32 s32, s31, 3")
    A("s_lshr_b32 s33, s31, 2")
    if rot == 0:
        A("s_mov_b32 s34, 0")
    elif rot == 1:
        A("s_lshl_b32 s34, s32, 1")
    else:
        A("s_lshl_b32 s34, s32, 1"); A("s_add_u32 s34, s34, s33")
        A("s_cmp_ge_u32 s34, 9"); A("s_cselect_b32 s35, 9, 0"); A("s_sub_u32 s34, s34, s35")
    A("s_lshl_b32 s30, s30, 3")
    A("s_add_u32 s33, s33, s30")
    A("s_mul_i32 s36, s32, 288")
    A("s_cmp_ge_u32 s3, 4")
    A("s_cbranch_scc1 L_producer")

    A("s_lshl_b32 s37, s33, 7"); A("s_lshl_b32 s38, s3, 5"); A("s_add_u32 s37, s37, s38"); A("s_mul_i32 s37, s37, 1152")
    A(f"s_mul_i32 s39, s3, {XR*XSLOT}")
    A("v_lshrrev_b32 v5, 3, v2")
    A("v_lshrrev_b32 v6, 4, v2")
    A("v_and_b32 v7, 7, v2")
    A("v_xor_b32 v8, v7, v6")
    A("v_mul_u32_u24 v3, 1152, v5")
    A("v_lshl_add_u32 v3, v8, 4, v3")
    A("v_xor_b32 v8, 4, v8")
    A("v_mul_u32_u24 v4, 1152, v5")
    A("v_lshl_add_u32 v4, v8, 4, v4")
    A("v_add_u32 v4, 9216, v4")
    A("v_and_b32 v11, 31, v2")
    A("v_lshrrev_b32 v12, 5, v2")
    A("v_lshlrev_b32 v9, 1, v11")
    A("v_lshl_add_u32 v9, v12, 16, v9")
    A("v_and_b32 v13, 15, v2")
    A("v_lshlrev_b32 v10, 1, v13")
    A("v_lshl_add_u32 v10, v6, 16, v10")
    A("s_waitcnt lgkmcnt(0)")
    def srd(d, lo, hi, size):
        A(f"s_mov_b32 s{d}, s{lo}"); A(f"s_mov_b32 s{d+1}, s{hi}"); A(f"s_mov_b32 s{d+2}, {size}"); A(f"s_mov_b32 s{d+3}, 0x20000")
    srd(12, 4, 5, 9437184)
    srd(20, 8, 9, 1152)
    srd(24, 10, 11, 9437184)
    A("s_mov_b32 s40, s34")
    nvm = [0]
    xdone = {}
    def issue_x(j):
        slot = j % XR
        A("s_lshl_b32 s41, s40, 7"); A("s_add_u32 s41, s41, s37"); A("s_add_u32 s42, s41, 18432")
        for i in range(4):
            A(f"s_add_u32 m0, s39, {slot*XSLOT + i*1024}")
            A("s_nop 0")
            A(f"buffer_load_dwordx4 v{3 + (i&1)}, s[12:15], s{41 + (i>>1)} offen lds {xmod}".rstrip())
            nvm[0] += 1
        xdone[j] = nvm[0]
        A("s_add_u32 s40, s40, 1"); A("s_cmp_eq_u32 s40, 9"); A("s_cselect_b32 s40, 0, s40")
    issue_x(0)
    for T in range(4):
        A(f"buffer_load_ushort v{36+4*T}, v9, s[20:23], s36 offen offset:{64*T}"); nvm[0] += 1
    A("buffer_load_ushort v80, v10, s[20:23], s36 offen offset:256"); nvm[0] += 1
    biasdone = nvm[0]
    A("s_barrier")
    for j in range(1, XD):
        issue_x(j)
        A("s_barrier")
    A("v_lshrrev_b32 v18, 1, v11"); A("v_and_b32 v18, 7, v18")
    A("v_lshlrev_b32 v19, 7, v11"); A("v_add_u32 v19, s39, v19")
    for s in range(4):
        A(f"v_add_u32 v20, {2*s}, v12"); A("v_xor_b32 v20, v20, v18"); A(f"v_lshl_add_u32 v{14+s}, v20, 4, v19")
    A("v_lshrrev_b32 v18, 1, v13")
    A("v_lshlrev_b32 v19, 7, v13"); A("v_add_u32 v19, s39, v19")
    for u in range(2):
        A(f"v_add_u32 v20, {4*u}, v6"); A("v_xor_b32 v20, v20, v18"); A(f"v_lshl_add_u32 v{21+u}, v20, 4, v19")
    A("v_lshrrev_b32 v18, 2, v13")
    A("v_and_b32 v19, 3, v2")
    A("v_lshl_add_u32 v20, v12, 3, v18")
    A(f"v_mul_u32_u24 v23, {WP}, v20")
    A("v_lshl_add_u32 v23, v19, 3, v23")
    A("v_and_b32 v20, 1, v6")
    A("v_lshl_add_u32 v23, v20, 5, v23")
    A(f"v_add_u32 v23, {WBASE}, v23")
    A("v_lshl_add_u32 v20, v6, 3, v18")
    A(f"v_mul_u32_u24 v24, {WP}, v20")
    A("v_lshl_add_u32 v24, v19, 3, v24")
    A(f"v_add_u32 v24, {WBASE+256}, v24")
    A(f"v_mul_u32_u24 v25, {EP}, v11"); A("v_lshl_add_u32 v25, v12, 3, v25"); A("v_add_u32 v25, s39, v25")
    A(f"v_mul_u32_u24 v26, {EP}, v13"); A("v_lshl_add_u32 v26, v6, 3, v26"); A("v_add_u32 v26, s39, v26"); A("v_add_u32 v26, 256, v26")
    A("s_and_b32 s43, s32, 1"); A("s_lshl_b32 s44, s43, 5")
    A("s_xor_b32 s45, s43, 1"); A("s_lshl_b32 s45, s45, 8")
    A("v_lshrrev_b32 v18, 2, v2")
    A(f"v_mul_u32_u24 v27, {EP}, v18"); A("v_lshl_add_u32 v27, v19, 4, v27"); A("v_add_u32 v27, s39, v27"); A("v_add_u32 v27, s44, v27")
    A("v_mul_u32_u24 v28, 1152, v18"); A("v_lshl_add_u32 v28, v19, 4, v28"); A("v_add_u32 v28, s44, v28")
    A("v_lshrrev_b32 v18, 1, v2"); A("v_and_b32 v20, 1, v2")
    A(f"v_mul_u32_u24 v29, {EP}, v18"); A("v_lshl_add_u32 v29, v20, 4, v29"); A("v_add_u32 v29, s39, v29"); A("v_add_u32 v29, s45, v29")
    A("v_mul_u32_u24 v30, 1152, v18"); A("v_lshl_add_u32 v30, v20, 4, v30"); A("v_add_u32 v30, s45, v30")
    A("s_add_u32 s46, s37, s36")
    A("s_add_u32 s47, s46, 18432")
    A("v_mov_b32 v32, 0x3f80")
    for r in (33, 34, 35): A(f"v_mov_b32 v{r}, 0")
    for T in range(4):
        for r in (1, 2, 3): A(f"v_mov_b32 v{36+4*T+r}, 0")
    for r in (81, 82, 83): A(f"v_mov_b32 v{r}, 0")
    A(f"s_waitcnt vmcnt({nvm[0]-biasdone})")
    ACC = lambda T: f"v[{96+16*T}:{111+16*T}]"
    SACC = lambda t: f"v[{160+4*t}:{163+4*t}]"
    for T in range(4):
        A(f"v_mfma_f32_32x32x16_bf16 {ACC(T)}, v[{36+4*T}:{39+4*T}], v[32:35], 0")
    for t in range(2):
        A(f"v_mfma_f32_16x16x32_bf16 {SACC(t)}, v[80:83], v[32:35], 0")
    XF = [32, 52]; WF = [36, 56]; SX = [72, 84]; SW = [80, 92]
    def reads(j, s):
        st = s & 1
        xs = (j % XR) * XSLOT; ws = (j % WR) * WSLOT
        n = 0
        A(f"ds_read_b128 v[{XF[st]}:{XF[st]+3}], v{14+s} offset:{xs}"); n += 1
        for T in range(4):
            r = WF[st] + 4*T
            A(f"ds_read_b64_tr_b16 v[{r}:{r+1}], v23 offset:{ws + s*16*WP + T*64}"); n += 1
            A(f"ds_read_b64_tr_b16 v[{r+2}:{r+3}], v23 offset:{ws + s*16*WP + T*64 + 4*WP}"); n += 1
        if s % 2 == 0:
            u = s // 2
            for t in range(2):
                A(f"ds_read_b128 v[{SX[u]+4*t}:{SX[u]+4*t+3}], v{21+u} offset:{xs + t*2048}"); n += 1
            A(f"ds_read_b64_tr_b16 v[{SW[u]}:{SW[u]+1}], v24 offset:{ws + u*32*WP}"); n += 1
            A(f"ds_read_b64_tr_b16 v[{SW[u]+2}:{SW[u]+3}], v24 offset:{ws + u*32*WP + 4*WP}"); n += 1
        return n
    def mfmas(s):
        st = s & 1
        for T in range(4):
            A(f"v_mfma_f32_32x32x16_bf16 {ACC(T)}, v[{WF[st]+4*T}:{WF[st]+4*T+3}], v[{XF[st]}:{XF[st]+3}], {ACC(T)}")
        if s % 2 == 0:
            u = s // 2
            for t in range(2):
                A(f"v_mfma_f32_16x16x32_bf16 {SACC(t)}, v[{SW[u]}:{SW[u]+3}], v[{SX[u]+4*t}:{SX[u]+4*t+3}], {SACC(t)}")
    for j in range(9):
        if j + XD < 9: issue_x(j + XD)
        A("s_barrier")
        A(f"s_waitcnt vmcnt({nvm[0]-xdone[j]})")
        if stamps and j in (0, 4, 8): A(f"s_memtime s[{62 + 2*(j//4)}:{63 + 2*(j//4)}]")
        n0_ = reads(j, 0)
        for s in range(4):
            if s < 3:
                n = reads(j, s + 1)
                A(f"s_waitcnt lgkmcnt({n})")
            else:
                A("s_waitcnt lgkmcnt(0)")
            mfmas(s)
    A("s_nop 7"); A("s_nop 7")
    for T in range(4):
        for q in range(4):
            b = 96 + 16*T + 4*q
            d = 32 + 2*((T*4+q) % 8)
            A(f"v_cvt_pk_bf16_f32 v{d}, v{b}, v{b+1}")
            A(f"v_cvt_pk_bf16_f32 v{d+1}, v{b+2}, v{b+3}")
            A(f"ds_write_b64 v25, v[{d}:{d+1}] offset:{T*64 + q*16}")
    for t in range(2):
        b = 160 + 4*t; d = 48 + 2*t
        A(f"v_cvt_pk_bf16_f32 v{d}, v{b}, v{b+1}")
        A(f"v_cvt_pk_bf16_f32 v{d+1}, v{b+2}, v{b+3}")
        A(f"ds_write_b64 v26, v[{d}:{d+1}] offset:{t*16*EP}")
    A("s_waitcnt lgkmcnt(0)")
    k = 0
    for rr in range(2):
        for a in range(4):
            A(f"ds_read_b128 v[{52+4*k}:{55+4*k}], v27 offset:{rr*16*EP + a*64}"); k += 1
    A(f"ds_read_b128 v[{52+4*k}:{55+4*k}], v29"); k += 1
    k = 0
    for rr in range(2):
        for a in range(4):
            A(f"s_waitcnt lgkmcnt({8-k})")
            A(f"buffer_store_dwordx4 v[{52+4*k}:{55+4*k}], v28, s[24:27], s{46+rr} offen offset:{a*64} {omod}".rstrip()); k += 1
    A("s_waitcnt lgkmcnt(0)")
    A(f"buffer_store_dwordx4 v[{52+4*k}:{55+4*k}], v30, s[24:27], s46 offen {omod}".rstrip())
    if stamps:
        A("s_memtime s[68:69]"); A("s_waitcnt vmcnt(0)"); A("s_memtime s[72:73]"); A("s_memrealtime s[74:75]"); A("s_waitcnt lgkmcnt(0)")
        for r in (62, 64, 66, 68, 72): A(f"s_sub_u32 s{r}, s{r}, s60")
        A("s_mov_b32 s76, s70"); A("s_mov_b32 s77, s71"); A("s_mov_b32 s78, 0x1000000"); A("s_mov_b32 s79, 0x20000")
        A("s_lshl_b32 s80, s2, 4"); A("s_add_u32 s80, s80, s3"); A("s_lshl_b32 s80, s80, 5")
        A("v_mov_b32 v1, s80")
        for i, r in enumerate((62, 64, 66, 68, 72, 74)): A(f"v_mov_b32 v{4+i}, s{r}")
        A("v_cmp_eq_u32 vcc, 0, v2"); A("s_and_saveexec_b64 s[82:83], vcc")
        A("buffer_store_dwordx4 v[4:7], v1, s[76:79], 0 offen"); A("buffer_store_dwordx2 v[8:9], v1, s[76:79], 0 offen offset:16")
    A("s_endpgm")

    A("L_producer:")
    A("s_sub_u32 s37, s3, 4"); A("s_mul_i32 s37, s37, 58")
    A("v_add_u32 v3, s37, v2")
    A("v_mul_u32_u24 v4, 3641, v3"); A("v_lshrrev_b32 v4, 16, v4")
    A("v_mul_u32_u24 v5, 18, v4"); A("v_sub_u32 v5, v3, v5")
    A("v_mul_u32_u24 v6, 4608, v4"); A("v_lshl_add_u32 v6, v5, 4, v6")
    A(f"v_mul_u32_u24 v7, {4*WP}, v4"); A("v_lshl_add_u32 v7, v5, 4, v7"); A(f"v_add_u32 v7, {WBASE}, v7")
    A("v_cmp_gt_u32 vcc, 58, v2")
    A("s_movk_i32 s38, 288")
    A("v_cmp_gt_u32 s[40:41], s38, v3")
    A("s_and_b64 s[40:41], s[40:41], vcc")
    A("s_mov_b32 s42, 0x80008000")
    A("s_waitcnt lgkmcnt(0)")
    srd(16, 6, 7, 663552)
    A("s_mov_b64 exec, s[40:41]")
    A("s_mov_b32 s43, s34")
    WBUF = [32 + 16*i for i in range(WD)]
    pv = [0]; wdone = {}
    def issue_w(j):
        b = WBUF[j % WD]
        A("s_mul_i32 s44, s43, 73728"); A("s_add_u32 s44, s44, s36")
        for i in range(4):
            A(f"buffer_load_dwordx4 v[{b+4*i}:{b+4*i+3}], v6, s[16:19], s44 offen offset:{1152*i} {wmod}".rstrip()); pv[0] += 1
        wdone[j] = pv[0]
        A("s_add_u32 s43, s43, 1"); A("s_cmp_eq_u32 s43, 9"); A("s_cselect_b32 s43, 0, s43")
    issue_w(0)
    A("s_barrier")
    for j in range(1, XD):
        if j < WD: issue_w(j)
        A("s_barrier")
    for j in range(XD, WD): issue_w(j)
    TB = 96
    def prune(b):
        U = lambda d, i: TB + 12*d + i
        X = lambda d, i: TB + 12*d + 4 + i
        R = lambda i, d: b + 4*i + d
        for i in range(4):
            for d in range(4): A(f"v_or_b32 v{U(d,i)}, s42, v{R(i,d)}")
        for d in range(4): A(f"v_pk_max_u16 v{X(d,0)}, v{U(d,0)}, v{U(d,1)}")
        for d in range(4): A(f"v_pk_min_u16 v{X(d,1)}, v{U(d,0)}, v{U(d,1)}")
        for d in range(4): A(f"v_pk_max_u16 v{X(d,2)}, v{U(d,2)}, v{U(d,3)}")
        for d in range(4): A(f"v_pk_min_u16 v{X(d,3)}, v{U(d,2)}, v{U(d,3)}")
        for d in range(4): A(f"v_pk_min_u16 v{X(d,0)}, v{X(d,0)}, v{X(d,2)}")
        for d in range(4): A(f"v_pk_max_u16 v{X(d,1)}, v{X(d,1)}, v{X(d,3)}")
        for d in range(4): A(f"v_pk_max_u16 v{X(d,0)}, v{X(d,0)}, v{X(d,1)}")
        for d in range(4): A(f"v_xor_b32 v{X(d,0)}, s42, v{X(d,0)}")
        for i in range(4):
            for d in range(4): A(f"v_sub_u32 v{U(d,i)}, v{U(d,i)}, v{X(d,0)}")
        for i in range(4):
            for d in range(4): A(f"v_pk_ashrrev_i16 v{U(d,i)}, 15, v{U(d,i)} op_sel_hi:[0,1]")
        for i in range(4):
            for d in range(4): A(f"v_and_b32 v{R(i,d)}, v{R(i,d)}, v{U(d,i)}")
    for j in range(9):
        b = WBUF[j % WD]
        A(f"s_waitcnt vmcnt({pv[0]-wdone[j]})")
        prune(b)
        ws = (j % WR) * WSLOT
        for i in range(4):
            A(f"ds_write_b128 v7, v[{b+4*i}:{b+4*i+3}] offset:{ws + i*WP}")
        A("s_waitcnt lgkmcnt(0)")
        if j + WD < 9: issue_w(j + WD)
        A("s_barrier")
    A("L_exit:")
    A("s_endpgm")
    body = "\n".join("    " + l if not l.endswith(":") else l for l in L)
    hdr = f"""; 2:4 structured-sparse (pruned) GEMM  out = x @ prune_2of4(w) + b   (generated by dev/gen1.py)
; @launch grid=(256,1,1) block=(576,1,1) lds={LDS_TOTAL}
.amdgcn_target "amdgcn-amd-amdhsa--gfx950"
.text
.globl {name}
.p2align 8
.type {name},@function
{name}:
"""
    ftr = f"""
.section .rodata,"a"
.p2align 6
.amdhsa_kernel {name}
  .amdhsa_next_free_vgpr 168
  .amdhsa_next_free_sgpr 96
  .amdhsa_accum_offset 168
  .amdhsa_group_segment_fixed_size 0
  .amdhsa_kernarg_size 48
  .amdhsa_user_sgpr_count 2
  .amdhsa_user_sgpr_kernarg_segment_ptr 1
  .amdhsa_system_sgpr_workgroup_id_x 1
.end_amdhsa_kernel
"""
    return hdr + body + ftr, LDS_TOTAL

META = """
.amdgpu_metadata
---
amdhsa.version: [1, 2]
amdhsa.kernels:
  - .name: {name}
    .symbol: {name}.kd
    .kernarg_segment_size: 48
    .kernarg_segment_align: 8
    .group_segment_fixed_size: 0
    .private_segment_fixed_size: 0
    .wavefront_size: 64
    .sgpr_count: 96
    .vgpr_count: 168
    .max_flat_workgroup_size: 1024
    .args:
      - {{.name: kernargs, .size: 48, .offset: 0, .value_kind: by_value}}
...
.end_amdgpu_metadata
"""
if __name__ == "__main__":
    import subprocess
    ap = argparse.ArgumentParser()
    ap.add_argument("out"); ap.add_argument("--xmod", default=""); ap.add_argument("--wmod", default=""); ap.add_argument("--omod", default="")
    ap.add_argument("--rot", type=int, default=2); ap.add_argument("--XR", type=int, default=3); ap.add_argument("--WR", type=int, default=3)
    ap.add_argument("--XD", type=int, default=2); ap.add_argument("--WD", type=int, default=2)
    ap.add_argument("--stamps", action="store_true"); ap.add_argument("--co", action="store_true")
    a = ap.parse_args()
    src, lds = gen(a.xmod, a.wmod, a.omod, a.rot, a.XR, a.WR, a.XD, a.WD, stamps=a.stamps)
    open(a.out, "w").write(src)
    print("lds", lds)
    if a.co:
        t = a.out + ".meta.s"
        open(t, "w").write(src + META.format(name=NAME))
        r = subprocess.run(["clang", "-x", "assembler", "-target", "amdgcn-amd-amdhsa", "-mcpu=gfx950", t, "-o", a.out.replace(".s", ".co")], capture_output=True, text=True)
        if r.returncode: print(r.stderr[:3000]); sys.exit(1)
```

```python
import sys, argparse, subprocess
NAME = "standalone__structured_sparse_n_m__ragged_kernel"

def gen(xmod="", wmod="", omod="", rot=2, XR=4, WR=3, XD=3, name=NAME, stamps=0, dry=0):
    L = []
    A = L.append
    XSLOT = 4096
    WBASE = 4 * XR * XSLOT
    WP = 320
    WSLOT = 64 * WP
    LDS_TOTAL = WBASE + WR * WSLOT
    EP = 304
    OOB = 0x7f000000
    assert XR * XSLOT >= 32 * EP and XD < XR
    def srd(d, lo, hi, size):
        A(f"s_mov_b32 s{d}, s{lo}"); A(f"s_mov_b32 s{d+1}, s{hi}"); A(f"s_mov_b32 s{d+2}, {size}"); A(f"s_mov_b32 s{d+3}, 0x20000")
    if stamps: A("s_memtime s[60:61]"); A("s_memrealtime s[84:85]")
    A("s_load_dwordx8 s[4:11], s[0:1], 0")
    A("s_cmp_ge_u32 s2, 256")
    A("s_cbranch_scc1 L_exit")
    if stamps: A("s_load_dwordx4 s[68:71], s[0:1], 32")
    A("v_lshrrev_b32 v1, 6, v0")
    A("v_and_b32 v2, 63, v0")
    if stamps == 3: A("v_mov_b32 v31, 0")
    A("v_readfirstlane_b32 s3, v1")
    A("s_lshr_b32 s31, s2, 3")
    A("s_and_b32 s32, s31, 3")
    A("s_lshr_b32 s33, s31, 2")
    if rot == 0: A("s_mov_b32 s40, 0")
    elif rot == 1: A("s_lshl_b32 s40, s32, 1")
    else:
        A("s_lshl_b32 s40, s32, 1"); A("s_add_u32 s40, s40, s33")
        A("s_cmp_ge_u32 s40, 9"); A("s_cselect_b32 s35, 9, 0"); A("s_sub_u32 s40, s40, s35")
    A("s_mul_i32 s36, s32, 288")
    A("s_mov_b32 s50, 0")
    A(f"s_mov_b32 s53, {OOB}")
    A(f"s_movk_i32 s90, {XSLOT}"); A(f"s_movk_i32 s91, {WSLOT}")
    A("s_cmp_ge_u32 s3, 4")
    A("s_cbranch_scc1 L_producer")
    A("s_and_b32 s30, s2, 7")
    A("s_lshl_b32 s30, s30, 3"); A("s_add_u32 s33, s33, s30")
    A("s_lshl_b32 s37, s33, 7"); A("s_lshl_b32 s38, s3, 5"); A("s_add_u32 s37, s37, s38"); A("s_mul_i32 s37, s37, 1152")
    A(f"s_mul_i32 s39, s3, {XR*XSLOT}")
    A("s_mov_b32 s52, s39")
    A(f"s_add_u32 s54, s39, {XR*XSLOT}")
    A("v_lshrrev_b32 v5, 3, v2")
    A("v_lshrrev_b32 v6, 4, v2")
    A("v_and_b32 v7, 7, v2")
    A("v_xor_b32 v8, v7, v6")
    A("v_mul_u32_u24 v3, 1152, v5")
    A("v_add_u32 v4, 9216, v3")
    A("v_lshl_add_u32 v3, v8, 4, v3")
    A("v_xor_b32 v8, 4, v8")
    A("v_lshl_add_u32 v4, v8, 4, v4")
    A("v_and_b32 v11, 31, v2")
    A("v_lshrrev_b32 v12, 5, v2")
    A("v_and_b32 v13, 15, v2")
    A("v_lshlrev_b32 v9, 1, v11"); A("v_lshl_add_u32 v9, v12, 16, v9")
    A("v_lshlrev_b32 v10, 1, v13"); A("v_lshl_add_u32 v10, v6, 16, v10")
    A("s_waitcnt lgkmcnt(0)")
    srd(12, 4, 5, 9437184)
    def dstamp(k):
        if stamps == 3:
            A("s_memtime s[92:93]"); A("s_lshl_b32 s94, s50, 2"); A(f"s_add_u32 s94, s94, {k}"); A("s_waitcnt lgkmcnt(0)")
            A("s_sub_u32 s92, s92, s60"); A("s_mov_b32 m0, s94"); A("s_nop 0"); A("v_writelane_b32 v31, s92, m0")
    def dflush():
        if stamps == 3:
            A("s_mov_b64 exec, -1")
            A("s_mov_b32 s76, s70"); A("s_mov_b32 s77, s71"); A("s_mov_b32 s78, 0x1000000"); A("s_mov_b32 s79, 0x20000")
            A("s_lshl_b32 s80, s2, 4"); A("s_add_u32 s80, s80, s3"); A("s_lshl_b32 s80, s80, 8")
            A("v_lshl_add_u32 v1, v2, 2, s80")
            A("buffer_store_dword v31, v1, s[76:79], 0 offen")
    def issue_x(guard):
        A("s_lshl_b32 s41, s40, 7"); A("s_add_u32 s41, s41, s37")
        if guard:
            A(f"s_cmp_lt_u32 s50, {9-XD}"); A("s_cselect_b32 s41, s41, s53")
        A("s_add_u32 s42, s41, 18432")
        for i in range(4):
            if i == 0: A("s_mov_b32 m0, s52")
            else: A("s_add_u32 m0, m0, 1024")
            A("s_nop 0")
            A(f"buffer_load_dwordx4 v{3 + (i&1)}, s[12:15], s{41 + (i>>1)} offen lds {xmod}".rstrip())
        A("s_add_u32 s40, s40, 1"); A("s_cmp_eq_u32 s40, 9"); A("s_cselect_b32 s40, 0, s40")
        A(f"s_add_u32 s52, s52, {XSLOT}"); A("s_cmp_eq_u32 s52, s54"); A("s_cselect_b32 s52, s39, s52")
    issue_x(False)
    srd(20, 8, 9, 1152)
    for T in range(4):
        A(f"buffer_load_ushort v{36+4*T}, v9, s[20:23], s36 offen offset:{64*T}")
    A("buffer_load_ushort v80, v10, s[20:23], s36 offen offset:256")
    A("s_barrier")
    A(f"s_mov_b32 s55, {XD-1}")
    A("L_cpre:")
    issue_x(False)
    A("s_barrier")
    A("s_sub_u32 s55, s55, 1"); A("s_cmp_lg_u32 s55, 0"); A("s_cbranch_scc1 L_cpre")
    srd(24, 10, 11, 9437184)
    A("v_lshrrev_b32 v18, 1, v11"); A("v_and_b32 v18, 7, v18")
    A("v_lshlrev_b32 v19, 7, v11"); A("v_add_u32 v19, s39, v19")
    A("v_xor_b32 v20, v12, v18")
    A("v_lshl_add_u32 v14, v20, 4, v19")
    for s in range(1, 4): A(f"v_xor_b32 v{14+s}, {32*s}, v14")
    A("v_lshrrev_b32 v18, 1, v13")
    A("v_lshlrev_b32 v19, 7, v13"); A("v_add_u32 v19, s39, v19")
    A("v_xor_b32 v20, v6, v18")
    A("v_lshl_add_u32 v21, v20, 4, v19")
    A("v_xor_b32 v22, 64, v21")
    A("v_lshrrev_b32 v18, 2, v13")
    A("v_and_b32 v19, 3, v2")
    A("v_lshl_add_u32 v20, v12, 3, v18")
    A(f"v_mul_u32_u24 v23, {WP}, v20")
    A("v_lshl_add_u32 v23, v19, 3, v23")
    A("v_and_b32 v20, 1, v6")
    A("v_lshl_add_u32 v23, v20, 5, v23")
    A(f"v_add_u32 v23, {WBASE}, v23")
    A("v_lshl_add_u32 v20, v6, 3, v18")
    A(f"v_mul_u32_u24 v24, {WP}, v20")
    A("v_lshl_add_u32 v24, v19, 3, v24")
    A(f"v_add_u32 v24, {WBASE+256}, v24")
    A(f"v_mul_u32_u24 v25, {EP}, v11"); A("v_lshl_add_u32 v25, v12, 3, v25"); A("v_add_u32 v25, s39, v25")
    A(f"v_mul_u32_u24 v26, {EP}, v13"); A("v_lshl_add_u32 v26, v6, 3, v26"); A("v_add_u32 v26, s39, v26")
    A("s_and_b32 s43, s32, 1"); A("s_lshl_b32 s44, s43, 5")
    A("s_xor_b32 s45, s43, 1"); A("s_lshl_b32 s45, s45, 8")
    A("s_add_u32 s46, s37, s36")
    A("s_add_u32 s48, s46, s45")
    A("s_add_u32 s46, s46, s44")
    A("s_add_u32 s47, s46, 18432")
    A("s_add_u32 s44, s44, s39"); A("s_add_u32 s45, s45, s39")
    A("v_lshrrev_b32 v18, 2, v2")
    A(f"v_mul_u32_u24 v27, {EP}, v18"); A("v_lshl_add_u32 v27, v19, 4, v27"); A("v_add_u32 v27, s44, v27")
    A("v_mul_u32_u24 v28, 1152, v18"); A("v_lshl_add_u32 v28, v19, 4, v28")
    A("v_lshrrev_b32 v18, 1, v2"); A("v_and_b32 v20, 1, v2")
    A(f"v_mul_u32_u24 v29, {EP}, v18"); A("v_lshl_add_u32 v29, v20, 4, v29"); A("v_add_u32 v29, s45, v29")
    A("v_mul_u32_u24 v30, 1152, v18"); A("v_lshl_add_u32 v30, v20, 4, v30")
    A("v_mov_b32 v32, 0x3f80")
    for r in (33, 34, 35): A(f"v_mov_b32 v{r}, 0")
    for T in range(4):
        for r in (1, 2, 3): A(f"v_mov_b32 v{36+4*T+r}, 0")
    for r in (81, 82, 83): A(f"v_mov_b32 v{r}, 0")
    A("s_mov_b32 s56, 0"); A("s_mov_b32 s57, 0")
    A(f"s_waitcnt vmcnt({4*(XD-1)})")
    ACC = lambda T: f"v[{96+16*T}:{111+16*T}]"
    SACC = lambda t: f"v[{160+4*t}:{163+4*t}]"
    for T in range(4):
        A(f"v_mfma_f32_32x32x16_bf16 {ACC(T)}, v[{36+4*T}:{39+4*T}], v[32:35], 0")
    for t in range(2):
        A(f"v_mfma_f32_16x16x32_bf16 {SACC(t)}, v[80:83], v[32:35], 0")
    XF = [32, 52]; WF = [36, 56]; SX = [72, 84]; SW = [80, 92]
    def reads(s):
        st = s & 1; n = 0
        A(f"ds_read_b128 v[{XF[st]}:{XF[st]+3}], v{14+s}"); n += 1
        for T in range(4):
            r = WF[st] + 4*T
            A(f"ds_read_b64_tr_b16 v[{r}:{r+1}], v23 offset:{s*16*WP + T*64}"); n += 1
            A(f"ds_read_b64_tr_b16 v[{r+2}:{r+3}], v23 offset:{s*16*WP + T*64 + 4*WP}"); n += 1
        if s % 2 == 0:
            u = s // 2
            for t in range(2):
                A(f"ds_read_b128 v[{SX[u]+4*t}:{SX[u]+4*t+3}], v{21+u} offset:{t*2048}"); n += 1
            A(f"ds_read_b64_tr_b16 v[{SW[u]}:{SW[u]+1}], v24 offset:{u*32*WP}"); n += 1
            A(f"ds_read_b64_tr_b16 v[{SW[u]+2}:{SW[u]+3}], v24 offset:{u*32*WP + 4*WP}"); n += 1
        return n
    def mfmas(s):
        st = s & 1
        for T in range(4):
            A(f"v_mfma_f32_32x32x16_bf16 {ACC(T)}, v[{WF[st]+4*T}:{WF[st]+4*T+3}], v[{XF[st]}:{XF[st]+3}], {ACC(T)}")
        if s % 2 == 0:
            u = s // 2
            for t in range(2):
                A(f"v_mfma_f32_16x16x32_bf16 {SACC(t)}, v[{SW[u]}:{SW[u]+3}], v[{SX[u]+4*t}:{SX[u]+4*t+3}], {SACC(t)}")
    A("L_cloop:")
    issue_x(True)
    dstamp(0)
    A("s_barrier")
    dstamp(1)
    A(f"s_waitcnt vmcnt({4*XD})")
    dstamp(2)
    if stamps in (1, 2):
        A("s_cmp_eq_u32 s50, 0"); A("s_cbranch_scc0 L_st1"); A("s_memtime s[62:63]"); A("L_st1:")
        A("s_cmp_eq_u32 s50, 4"); A("s_cbranch_scc0 L_st2"); A("s_memtime s[64:65]"); A("L_st2:")
        A("s_cmp_eq_u32 s50, 8"); A("s_cbranch_scc0 L_st3"); A("s_memtime s[66:67]"); A("L_st3:")
        A("s_waitcnt lgkmcnt(0)")
    reads(0)
    for s in range(4):
        if s < 3:
            n = reads(s + 1)
            if s == 2:
                A("s_add_u32 s56, s56, 1"); A(f"s_cmp_eq_u32 s56, {XR}"); A(f"s_cselect_b32 s58, {-(XR-1)*XSLOT & 0xffffffff}, s90"); A("s_cselect_b32 s56, 0, s56")
                A("s_add_u32 s57, s57, 1"); A(f"s_cmp_eq_u32 s57, {WR}"); A(f"s_cselect_b32 s59, {-(WR-1)*WSLOT & 0xffffffff}, s91"); A("s_cselect_b32 s57, 0, s57")
                for r in (14, 15, 16, 17, 21, 22): A(f"v_add_u32 v{r}, s58, v{r}")
                for r in (23, 24): A(f"v_add_u32 v{r}, s59, v{r}")
            A(f"s_waitcnt lgkmcnt({n})")
        else:
            A("s_waitcnt lgkmcnt(0)")
        mfmas(s)
    dstamp(3)
    A("s_add_u32 s50, s50, 1"); A("s_cmp_lt_u32 s50, 9"); A("s_cbranch_scc1 L_cloop")
    A("s_waitcnt vmcnt(0)")
    A("s_nop 7"); A("s_nop 3")
    for T in range(4):
        for q in range(4):
            b = 96 + 16*T + 4*q
            d = 32 + 2*((T*4+q) % 8)
            A(f"v_cvt_pk_bf16_f32 v{d}, v{b}, v{b+1}")
            A(f"v_cvt_pk_bf16_f32 v{d+1}, v{b+2}, v{b+3}")
            A(f"ds_write_b64 v25, v[{d}:{d+1}] offset:{T*64 + q*16}")
    for t in range(2):
        b = 160 + 4*t; d = 48 + 2*t
        A(f"v_cvt_pk_bf16_f32 v{d}, v{b}, v{b+1}")
        A(f"v_cvt_pk_bf16_f32 v{d+1}, v{b+2}, v{b+3}")
        A(f"ds_write_b64 v26, v[{d}:{d+1}] offset:{256 + t*16*EP}")
    A("s_waitcnt lgkmcnt(0)")
    k = 0
    for rr in range(2):
        for a in range(4):
            A(f"ds_read_b128 v[{52+4*k}:{55+4*k}], v27 offset:{rr*16*EP + a*64}"); k += 1
    A(f"ds_read_b128 v[{52+4*k}:{55+4*k}], v29"); k += 1
    k = 0
    for rr in range(2):
        for a in range(4):
            A(f"s_waitcnt lgkmcnt({8-k})")
            A(f"buffer_store_dwordx4 v[{52+4*k}:{55+4*k}], v28, s[24:27], s{46+rr} offen offset:{a*64} {omod}".rstrip()); k += 1
    A("s_waitcnt lgkmcnt(0)")
    A(f"buffer_store_dwordx4 v[{52+4*k}:{55+4*k}], v30, s[24:27], s48 offen {omod}".rstrip())
    dstamp(0); A("s_waitcnt vmcnt(0)") if stamps == 3 else None; dstamp(1); dflush()
    if stamps in (1, 2):
        A("s_memtime s[86:87]"); A("s_waitcnt vmcnt(0)"); A("s_memtime s[72:73]"); A("s_memrealtime s[74:75]"); A("s_waitcnt lgkmcnt(0)")
        for r in (62, 64, 66, 86, 72): A(f"s_sub_u32 s{r}, s{r}, s60")
        if stamps == 1:
            A("s_mov_b32 s76, s70"); A("s_mov_b32 s77, s71"); A("s_mov_b32 s78, 0x1000000"); A("s_mov_b32 s79, 0x20000")
            A("s_lshl_b32 s80, s2, 4"); A("s_add_u32 s80, s80, s3"); A("s_lshl_b32 s80, s80, 5")
            A("v_mov_b32 v1, s80")
            for i, r in enumerate((62, 64, 66, 86, 72, 74, 84)): A(f"v_mov_b32 v{4+i}, s{r}")
            A("v_cmp_eq_u32 vcc, 0, v2"); A("s_and_saveexec_b64 s[82:83], vcc")
            A("buffer_store_dwordx4 v[4:7], v1, s[76:79], 0 offen"); A("buffer_store_dwordx3 v[8:10], v1, s[76:79], 0 offen offset:16")
        else:
            A("s_mov_b32 s76, s68"); A("s_mov_b32 s77, s69"); A("s_mov_b32 s78, 256"); A("s_mov_b32 s79, 0x20000")
            A("s_not_b32 s84, s84")
            A("v_mov_b32 v1, 0")
            for i, r in enumerate((84, 74, 62, 64, 66, 86, 72)): A(f"v_mov_b32 v{4+i}, s{r}")
            A("v_cmp_eq_u32 vcc, 0, v2"); A("s_and_saveexec_b64 s[82:83], vcc")
            for i in range(7): A(f"buffer_atomic_umax v{4+i}, v1, s[76:79], 0 offen offset:{4*i}")
            for r in (62, 64, 66, 86, 72): A(f"s_not_b32 s{r}, s{r}")
            for i, r in enumerate((62, 64, 66, 86, 72)): A(f"v_mov_b32 v{4+i}, s{r}")
            for i in range(5): A(f"buffer_atomic_umax v{4+i}, v1, s[76:79], 0 offen offset:{32+4*i}")
    A("s_endpgm")

    A("L_producer:")
    A("s_sub_u32 s37, s3, 4"); A("s_mul_i32 s37, s37, 58")
    A("v_add_u32 v3, s37, v2")
    A("v_mul_u32_u24 v4, 3641, v3"); A("v_lshrrev_b32 v4, 16, v4")
    A("v_mul_u32_u24 v5, 18, v4"); A("v_sub_u32 v5, v3, v5")
    A("v_mul_u32_u24 v6, 4608, v4"); A("v_lshl_add_u32 v6, v5, 4, v6")
    A("v_cmp_gt_u32 vcc, 58, v2")
    A("s_movk_i32 s38, 288")
    A("v_cmp_gt_u32 s[44:45], s38, v3")
    A(f"v_mul_u32_u24 v7, {4*WP}, v4"); A("v_lshl_add_u32 v7, v5, 4, v7"); A(f"v_add_u32 v7, {WBASE}, v7")
    A("s_and_b64 exec, s[44:45], vcc")
    A("s_mov_b32 s42, 0x80008000")
    A("s_mov_b32 s57, 0")
    A("s_waitcnt lgkmcnt(0)")
    srd(16, 6, 7, 663552)
    WBUF = [32, 48]
    def issue_w(b, guard):
        A("s_mul_i32 s44, s40, 73728"); A("s_add_u32 s44, s44, s36")
        if guard:
            A("s_cmp_lt_u32 s50, 7"); A("s_cselect_b32 s44, s44, s53")
        for i in range(4):
            A(f"buffer_load_dwordx4 v[{b+4*i}:{b+4*i+3}], v6, s[16:19], s44 offen offset:{1152*i} {wmod}".rstrip())
        A("s_add_u32 s40, s40, 1"); A("s_cmp_eq_u32 s40, 9"); A("s_cselect_b32 s40, 0, s40")
    issue_w(WBUF[0], False)
    A("s_barrier")
    issue_w(WBUF[1], False)
    for j in range(1, XD): A("s_barrier")
    TB = 96
    def prune(b):
        U = lambda d, i: TB + 12*d + i
        X = lambda d, i: TB + 12*d + 4 + i
        R = lambda i, d: b + 4*i + d
        for i in range(4):
            for d in range(4): A(f"v_or_b32 v{U(d,i)}, s42, v{R(i,d)}")
        for d in range(4): A(f"v_pk_max_u16 v{X(d,0)}, v{U(d,0)}, v{U(d,1)}")
        for d in range(4): A(f"v_pk_min_u16 v{X(d,1)}, v{U(d,0)}, v{U(d,1)}")
        for d in range(4): A(f"v_pk_max_u16 v{X(d,2)}, v{U(d,2)}, v{U(d,3)}")
        for d in range(4): A(f"v_pk_min_u16 v{X(d,3)}, v{U(d,2)}, v{U(d,3)}")
        for d in range(4): A(f"v_pk_min_u16 v{X(d,0)}, v{X(d,0)}, v{X(d,2)}")
        for d in range(4): A(f"v_pk_max_u16 v{X(d,1)}, v{X(d,1)}, v{X(d,3)}")
        for d in range(4): A(f"v_pk_max_u16 v{X(d,0)}, v{X(d,0)}, v{X(d,1)}")
        for d in range(4): A(f"v_xor_b32 v{X(d,0)}, s42, v{X(d,0)}")
        for i in range(4):
            for d in range(4): A(f"v_sub_u32 v{U(d,i)}, v{U(d,i)}, v{X(d,0)}")
        for i in range(4):
            for d in range(4): A(f"v_pk_ashrrev_i16 v{U(d,i)}, 15, v{U(d,i)} op_sel_hi:[0,1]")
        for i in range(4):
            for d in range(4): A(f"v_and_b32 v{R(i,d)}, v{R(i,d)}, v{U(d,i)}")
    A("L_ploop:")
    for half in range(2):
        b = WBUF[half]
        A("s_waitcnt vmcnt(4)")
        dstamp(0)
        prune(b)
        dstamp(1)
        for i in range(4):
            A(f"ds_write_b128 v7, v[{b+4*i}:{b+4*i+3}] offset:{i*WP}")
        A("s_add_u32 s57, s57, 1"); A(f"s_cmp_eq_u32 s57, {WR}"); A(f"s_cselect_b32 s59, {-(WR-1)*WSLOT & 0xffffffff}, s91"); A("s_cselect_b32 s57, 0, s57")
        A("s_waitcnt lgkmcnt(0)")
        issue_w(b, True)
        A("v_add_u32 v7, s59, v7")
        dstamp(2)
        A("s_barrier")
        dstamp(3)
        A("s_add_u32 s50, s50, 1")
        if half == 0:
            A("s_cmp_eq_u32 s50, 9"); A("s_cbranch_scc1 L_pexit")
        else:
            A("s_branch L_ploop")
    A("L_pexit:")
    dflush()
    A("L_exit:")
    A("s_endpgm")
    body = "\n".join("    " + l if not l.endswith(":") else l for l in L)
    hdr = f"""; 2:4 structured-sparse (pruned) GEMM  out = x @ prune_2of4(w) + b   (generated by dev/gen2.py)
; @launch grid=(256,1,1) block=(576,1,1) lds={LDS_TOTAL}
.amdgcn_target "amdgcn-amd-amdhsa--gfx950"
.text
.globl {name}
.p2align 8
.type {name},@function
{name}:
"""
    ftr = f"""
.section .rodata,"a"
.p2align 6
.amdhsa_kernel {name}
  .amdhsa_next_free_vgpr 168
  .amdhsa_next_free_sgpr 96
  .amdhsa_accum_offset 168
  .amdhsa_group_segment_fixed_size 0
  .amdhsa_kernarg_size 48
  .amdhsa_user_sgpr_count 2
  .amdhsa_user_sgpr_kernarg_segment_ptr 1
  .amdhsa_system_sgpr_workgroup_id_x 1
.end_amdhsa_kernel
"""
    return hdr + body + ftr, LDS_TOTAL

from gen1 import META
def build_co(src, out):
    t = out + ".meta.s"
    open(t, "w").write(src + META.format(name=NAME))
    r = subprocess.run(["clang", "-x", "assembler", "-target", "amdgcn-amd-amdhsa", "-mcpu=gfx950", t, "-o", out.replace(".s", ".co")], capture_output=True, text=True)
    if r.returncode: print(r.stderr[:3000]); sys.exit(1)
if __name__ == "__main__":
    ap = argparse.ArgumentParser()
    ap.add_argument("out"); ap.add_argument("--xmod", default=""); ap.add_argument("--wmod", default=""); ap.add_argument("--omod", default="")
    ap.add_argument("--rot", type=int, default=2); ap.add_argument("--XR", type=int, default=4); ap.add_argument("--WR", type=int, default=3)
    ap.add_argument("--XD", type=int, default=3)
    ap.add_argument("--stamps", type=int, default=0); ap.add_argument("--co", action="store_true")
    a = ap.parse_args()
    src, lds = gen(a.xmod, a.wmod, a.omod, a.rot, a.XR, a.WR, a.XD, stamps=a.stamps)
    open(a.out, "w").write(src)
    print("lds", lds)
    if a.co: build_co(src, a.out)
```
